```python
import torch

def _softmax(x, axis=-1):
    return torch.softmax(x, dim=axis)
def _gelu(x):
    return torch.nn.functional.gelu(x, approximate="tanh")
def _silu(x):
    return torch.nn.functional.silu(x)
def _sigmoid(x):
    return torch.sigmoid(x)
def _layernorm(x, axis=-1, eps=1e-5):
    m = x.mean(dim=axis, keepdim=True)
    v = x.var(dim=axis, keepdim=True, unbiased=False)
    return (x - m) / torch.sqrt(v + eps)
def _scatter_add(tgt, idx, src, axis=0):
    return tgt.clone().index_add_(axis, idx, src)
def _segment_sum(src, seg, n):
    out = torch.zeros((n,) + src.shape[1:], dtype=src.dtype)
    return out.index_add_(0, seg, src)
def _pad(x, pw):
    flat = tuple(v for pair in reversed(pw) for v in pair)
    return torch.nn.functional.pad(x, flat)

kernel_name = 'interleave_layers__softmax_full_mha__glu_gated_glu__prompt'

def setup_inputs():

    _w = (lambda a: (lambda t: t.to(torch.bfloat16) if t.is_floating_point() else t)(torch.as_tensor(a)))
    def _A_setup():
        B, S, D = 1, 2048, 512
        return {
            "x": _w((lambda *s: torch.randn(*s, dtype=torch.bfloat16) * 0.05)(B, S, D)),
            "wqkv": _w((lambda *s: torch.randn(*s, dtype=torch.bfloat16) * 0.05)(D, 3 * D)),
            "wo": _w((lambda *s: torch.randn(*s, dtype=torch.bfloat16) * 0.05)(D, D)),
        }
    _A_in = _A_setup()

    def _B_setup():
        B, S, D, F = 1, 2048, 512, 1792
        return {
            "x": _w((lambda *s: torch.randn(*s, dtype=torch.bfloat16) * 0.05)(B, S, D)),
            "w_gate": _w((lambda *s: torch.randn(*s, dtype=torch.bfloat16) * 0.05)(D, F)),
            "w_up": _w((lambda *s: torch.randn(*s, dtype=torch.bfloat16) * 0.05)(D, F)),
            "w_down": _w((lambda *s: torch.randn(*s, dtype=torch.bfloat16) * 0.05)(F, D)),
        }
    _B_in = _B_setup()

    return {
        "A_x": _A_in["x"],
        "A_wqkv": _A_in["wqkv"],
        "A_wo": _A_in["wo"],
        "B_x": _B_in["x"],
        "B_w_gate": _B_in["w_gate"],
        "B_w_up": _B_in["w_up"],
        "B_w_down": _B_in["w_down"],
    }

def reference(A_x, A_wqkv, A_wo, B_x, B_w_gate, B_w_up, B_w_down):
    def _A_ref(x, wqkv, wo):
        B, S, D = x.shape
        H = 32; Dh = D // H
        qkv = (lambda x, *d: x.permute(*d))((x @ wqkv).reshape(B, S, 3, H, Dh), 2, 0, 3, 1, 4)
        q, k, v = qkv[0], qkv[1], qkv[2]
        scale = Dh ** -0.5
        scores = torch.einsum("bhqd,bhkd->bhqk", q, k) * scale
        p = _softmax(scores, axis=-1)
        o = torch.einsum("bhqk,bhkd->bhqd", p, v)
        return (lambda x, *d: x.permute(*d))(o, 0, 2, 1, 3).reshape(B, S, D) @ wo

    def _B_ref(x, w_gate, w_up, w_down):
        g = torch.einsum("bsd,df->bsf", x, w_gate)
        u = torch.einsum("bsd,df->bsf", x, w_up)
        h = _sigmoid(g) * u
        return torch.einsum("bsf,fd->bsd", h, w_down)

    x = A_x
    x = x + _A_ref(_layernorm(x, axis=-1), A_wqkv, A_wo)
    x = x + _B_ref(_layernorm(x, axis=-1), B_w_gate, B_w_up, B_w_down)
    x = x + _A_ref(_layernorm(x, axis=-1), A_wqkv, A_wo)
    x = x + _B_ref(_layernorm(x, axis=-1), B_w_gate, B_w_up, B_w_down)
    return x
```

```python
import re

REG_RE = re.compile(r'^(-?)\|?([vsa])(\d+)\|?$')
RNG_RE = re.compile(r'^(-?)([vsa])\[(\d+):(\d+)\]$')

def regs_of(op):
    op = op.strip()
    if op.startswith('neg(') : op = op[4:-1]
    m = REG_RE.match(op)
    if m: return [(m.group(2), int(m.group(3)))]
    m = RNG_RE.match(op)
    if m: return [(m.group(2), i) for i in range(int(m.group(3)), int(m.group(4))+1)]
    if op == 'vcc': return [('s','vcc')]
    if op in ('vcc_lo','vcc_hi'): return [('s','vcc')]
    if op == 'exec': return [('s','exec')]
    if op == 'm0': return [('s','m0')]
    return []

TRANS = ('v_exp_f32','v_log_f32','v_rcp_f32','v_rsq_f32','v_sqrt_f32','v_sin_f32','v_cos_f32','v_exp_f16','v_rcp_f16','v_rcp_iflag_f32')

class Ins:
    __slots__=('text','mn','kind','dst','src','passes','isdpp','istrans','c','cexact','label','target','nopn','storedata','ldsdma')
    pass

def parse(text):
    I = Ins(); I.text = text; I.label=None; I.target=None; I.passes=0; I.isdpp=False; I.istrans=False
    I.c=[]; I.nopn=0; I.storedata=[]; I.ldsdma=False; I.dst=[]; I.src=[]; I.cexact=None
    t = text.split(';')[0].strip()
    if t.endswith(':') and ' ' not in t:
        I.kind='label'; I.label=t[:-1]; I.mn=''; return I
    if not t or t.startswith('.'):
        I.kind='none'; I.mn=''; return I
    parts = t.split(None,1)
    mn = parts[0]; I.mn = mn
    rest = parts[1] if len(parts)>1 else ''
    ops=[]; cur=''; depth=0
    for ch in rest:
        if ch=='[': depth+=1
        if ch==']': depth-=1
        if ch==',' and depth==0: ops.append(cur.strip()); cur=''
        else: cur+=ch
    if cur.strip(): ops.append(cur.strip())
    mods=''
    if ops:
        l = ops[-1].split(None,1)
        ops[-1]=l[0]
        if len(l)>1: mods=l[1]
    R = [regs_of(o) for o in ops]
    flat = lambda L: [r for x in L for r in x]
    if mn.startswith('v_mfma'):
        I.kind='mfma'; I.passes = 8 if '32x32x16' in mn else 4 if '16x16x32' in mn else 16
        I.dst=R[0]; I.src=R[1]+R[2]; I.c=R[3]; return I
    if mn.startswith('v_'):
        I.kind='valu'
        base = mn.replace('_e32','').replace('_e64','').replace('_dpp','').replace('_sdwa','')
        I.istrans = base in TRANS
        I.isdpp = ('quad_perm' in mods or 'row_' in mods or 'wave_' in mods or mn.endswith('_dpp') or 'quad_perm' in rest or 'row_' in rest)
        if 'permlane' in mn:
            I.kind='permlane'; I.dst=flat(R); I.src=flat(R); return I
        if mn.startswith('v_cmp'):
            I.dst=R[0]; I.src=flat(R[1:]);
            if mn.startswith('v_cmpx'): I.dst=I.dst+[('s','exec')]
            return I
        if mn.startswith('v_readfirstlane') or mn.startswith('v_readlane'):
            I.kind='readlane'; I.dst=R[0]; I.src=flat(R[1:]); return I
        I.dst=R[0]; I.src=flat(R[1:])
        if base in ('v_add_co_u32','v_sub_co_u32','v_addc_co_u32','v_subb_co_u32'):
            I.dst=R[0]+R[1]; I.src=flat(R[2:])
        if base in ('v_fmac_f32','v_mac_f32','v_dot2c_f32_bf16','v_pk_fmac_f16','v_fmaak_f32x'): I.src=I.src+R[0]
        if base=='v_cndmask_b32' and len(ops)==3: I.src=I.src+[('s','vcc')]
        return I
    if mn.startswith('ds_'):
        I.kind='ds'
        if mn.startswith('ds_read') or mn.startswith('ds_bpermute') or mn.startswith('ds_swizzle') or mn.startswith('ds_permute'):
            I.dst=R[0]; I.src=flat(R[1:])
        else:
            I.src=flat(R)
        return I
    if mn.startswith('buffer_') or mn.startswith('global_') or mn.startswith('flat_'):
        I.kind='vmem'
        islds = re.search(r'\blds\b', rest) is not None
        if 'load' in mn and islds:
            I.ldsdma=True; I.src=flat(R)+[('s','m0')]
        elif 'load' in mn:
            I.dst=R[0]; I.src=flat(R[1:])
        elif 'store' in mn:
            I.src=flat(R)
            d = R[0] if mn.startswith('buffer_') else R[1]
            if 'x3' in mn or 'x4' in mn: I.storedata=d
        elif 'atomic' in mn:
            I.src=flat(R)
            if 'sc0' in mods or 'glc' in mods: I.dst=R[0]
        else:
            I.src=flat(R)
        return I
    if mn.startswith('s_'):
        I.kind='salu'
        if mn=='s_nop': I.nopn=int(ops[0],0); return I
        if mn in ('s_branch',) or mn.startswith('s_cbranch'):
            I.kind='branch'; I.target=ops[0]; return I
        if mn in ('s_waitcnt','s_barrier','s_endpgm','s_setprio','s_sleep') or mn.startswith('s_cmp') or mn.startswith('s_bitcmp'):
            I.src=flat(R) if mn.startswith('s_cmp') or mn.startswith('s_bitcmp') else []
            return I
        I.dst=R[0] if R else []; I.src=flat(R[1:]); return I
    raise ValueError("cannot parse: "+text)

def isv(r): return r[0] in 'va'

def need(P, C):
    n=0
    Pd=set(P.dst);
    if P.kind in ('valu','permlane','readlane'):
        vd = {r for r in Pd if isv(r)}; sd = {r for r in Pd if not isv(r)}
        if vd:
            if C.kind=='mfma' and vd & (set(C.src)|set(C.c)): n=max(n,2)
            if C.kind=='permlane' and vd & set(C.src): n=max(n,2)
            if C.isdpp and vd & set(C.src): n=max(n,2)
            if C.kind=='readlane' and vd & set(C.src): n=max(n,1)
            if P.istrans and C.kind in ('valu','permlane','readlane','mfma') and not C.istrans and vd & set(C.src): n=max(n,1)
            if P.istrans and C.kind in ('valu',) and C.istrans and vd & set(C.src): n=max(n,1)
        if sd:
            if C.kind in ('valu','permlane','readlane') and sd & set(C.src): n=max(n,2)
            if C.kind=='vmem' and sd & set(C.src): n=max(n,5)
            if C.kind=='salu' and sd & set(C.src): n=max(n,2)
            if C.kind=='branch' and ('s','vcc') in sd and 'vcc' in C.mn: n=max(n,5)
            if ('s','exec') in sd:
                if C.kind=='mfma': n=max(n,4)
                if C.isdpp: n=max(n,5)
                if C.kind in('permlane','readlane'): n=max(n,4)
    if P.kind=='mfma':
        p=P.passes; w={4:8,8:12,16:20}[p]
        if C.kind in ('valu','permlane','readlane'):
            if Pd & (set(C.src)|set(C.dst)): n=max(n,w)
            if set(P.c) & set(C.dst): n=max(n,{4:3,8:7,16:15}[p])
        if C.kind in ('vmem','ds'):
            if Pd & (set(C.src)|set(C.dst)): n=max(n,w)
        if C.kind=='mfma':
            if Pd & set(C.src): n=max(n,w)
            if Pd & set(C.c):
                if not (P.dst==C.c and P.passes==C.passes): n=max(n,{4:6,8:10,16:18}[p])
            if Pd & set(C.dst) and not (Pd & set(C.c)): n=max(n,{4:6,8:10,16:18}[p] if P.dst!=C.dst else 0)
    if P.kind=='salu' and ('s','m0') in Pd and C.ldsdma: n=max(n,1)
    if P.kind=='vmem' and P.storedata:
        if C.kind in ('valu','permlane') and set(P.storedata)&set(C.dst): n=max(n,2)
        if C.kind in ('ds','vmem') and set(P.storedata)&set(C.dst): n=max(n,1)
    return n

MAXW=21
class Asm:
    def __init__(self):
        self.L=[]
    def __call__(self, s):
        for line in s.split('\n'):
            if line.strip(): self.L.append(line.strip())
    def label(self, n): self.L.append(n+':')
    def comment(self, s): self.L.append('; '+s)
    def finalize(self):
        ins=[parse(t) if not t.startswith(';') else None for t in self.L]
        labelpos={I.label:i for i,I in enumerate(ins) if I is not None and I.kind=='label'}
        out=[]
        pend=[]
        fwd={}
        def age(p,k):
            return [[I,a+k] for I,a in p if a+k<MAXW]
        def required(p, C):
            k=0
            for P,a in p:
                k=max(k, need(P,C)-a)
            return k
        nnops=0
        for i,(t,I) in enumerate(zip(self.L,ins)):
            if I is None or I.kind=='none':
                out.append(t); continue
            if I.kind=='label':
                for st in fwd.pop(I.label,[]):
                    pend = pend + st
                out.append(t); continue
            k=required(pend,I)
            if I.kind=='branch' and I.target in labelpos and labelpos[I.target]<i:
                a=1; j=labelpos[I.target]
                cnt=0
                while j<len(ins) and cnt<MAXW:
                    J=ins[j]; j+=1
                    if J is None or J.kind in('none','label'): continue
                    kk=0
                    for P,ag in pend: kk=max(kk, need(P,J)-(ag+a))
                    k=max(k,kk)
                    a+= (J.nopn+1) if J.mn=='s_nop' else 1
                    cnt+=1
                    if J.kind=='branch': break
            while k>0:
                m=min(k,16); out.append(f's_nop {m-1}'); pend=age(pend,m); k-=m; nnops+=1
            out.append(t)
            step=(I.nopn+1) if I.mn=='s_nop' else 1
            pend=age(pend,step)
            if I.kind=='branch':
                if I.target in labelpos and labelpos[I.target]>i:
                    fwd.setdefault(I.target,[]).append([[P,a] for P,a in pend])
                if I.mn=='s_branch': pend=[]
            if I.mn=='s_endpgm': pend=[]
            if I.kind in('valu','permlane','readlane','mfma','salu','vmem') : pend.append([I,0])
        self.nnops=nnops
        return '\n'.join(('    '+t if not (t.endswith(':') and ' ' not in t) else t) for t in out)+'\n'
```

```python
import sys
from asmlib import Asm

NAME = "interleave_layers__softmax_full_mha__glu_gated_glu__prompt"
MB = 1<<20
WS_X1=0*MB; WS_X2=2*MB; WS_Q=4*MB; WS_K=6*MB; WS_V=8*MB; WS_O=10*MB; WS_H=12*MB
ARG = dict(x=0, wqkv=8, wo=16, wg=32, wu=40, wd=48, out=56, dbg=64, ws=72)
LOG2E = 1.4426950408889634
import struct
def f2u(f): return struct.unpack('<I', struct.pack('<f', f))[0]
def vr(a, n=1): return f"v{a}" if n==1 else f"v[{a}:{a+n-1}]"
def sr(a, n=1): return f"s{a}" if n==1 else f"s[{a}:{a+n-1}]"

S_W=3
SRD_A=8; SRD_W=12; SRD_W2=16; SRD_O=20; SRD_R=24
PTR=60

def prologue(a, nwg, ptrs):
    a(f"s_cmp_ge_u32 s2, {nwg}")
    a(f"s_cbranch_scc1 {a.pre}_END")
    names=[]
    for srd,(nm,off),nb in ptrs:
        if nm not in names: names.append(nm)
    for i,nm in enumerate(names):
        a(f"s_load_dwordx2 {sr(PTR+2*i,2)}, s[0:1], {ARG[nm]}")
    a("v_lshrrev_b32 v2, 6, v0")
    a("v_and_b32 v1, 63, v0")
    a(f"v_readfirstlane_b32 s{S_W}, v2")
    a("s_waitcnt lgkmcnt(0)")
    for srd,(nm,off),nb in ptrs:
        p=PTR+2*names.index(nm)
        if off:
            a(f"s_add_u32 s{srd}, s{p}, {off}")
            a(f"s_addc_u32 s{srd+1}, s{p+1}, 0")
        else:
            a(f"s_mov_b32 s{srd}, s{p}")
            a(f"s_mov_b32 s{srd+1}, s{p+1}")
        a(f"s_mov_b32 s{srd+2}, {nb}")
        a(f"s_mov_b32 s{srd+3}, 0x20000")

def pack8(a, dst, src):
    for i in range(4):
        a(f"v_cvt_pk_bf16_f32 v{dst+i}, v{src+2*i}, v{src+2*i+1}")

def ln_gemm(a, mode, xspec):
    P1 = mode=='p1'
    TOK = 64 if P1 else 128
    NSLAB = 3 if P1 else 4
    XB = TOK*128
    STAGE = XB + NSLAB*8192
    NST = 4 if P1 else 3
    NCH = 8
    LDW = 3072 if P1 else 3584
    STAT = NST*STAGE
    MEAN=STAT; RSTD=STAT+TOK*4; CS=STAT+TOK*8
    XI = TOK//32
    NDMA = XI + 2*NSLAB
    pre=a.pre
    if P1:
        prologue(a, 256, [(SRD_A,xspec,2*MB),(SRD_W,('wqkv',0),512*3072),(SRD_O,('ws',WS_Q),6*MB)])
        a("s_and_b32 s28, s2, 7"); a("s_lshr_b32 s29, s2, 3")
        a("s_and_b32 s30, s28, 1"); a("s_lshl_b32 s30, s30, 2"); a("s_and_b32 s31, s29, 3"); a("s_add_u32 s30, s30, s31  ; hg")
        a("s_lshr_b32 s31, s28, 1"); a("s_lshl_b32 s31, s31, 3"); a("s_lshr_b32 s32, s29, 2"); a("s_add_u32 s31, s31, s32  ; tbk")
    else:
        prologue(a, 224, [(SRD_A,xspec,2*MB),(SRD_W,('wg',0),512*3584),(SRD_W2,('wu',0),512*3584),(SRD_O,('ws',WS_H),7*MB)])
        a("s_and_b32 s28, s2, 7"); a("s_lshr_b32 s29, s2, 3")
        a("s_and_b32 s30, s28, 1"); a("s_mul_i32 s30, s30, 7"); a("s_lshr_b32 s31, s29, 2"); a("s_add_u32 s30, s30, s31  ; fblk")
        a("s_lshr_b32 s31, s28, 1"); a("s_lshl_b32 s31, s31, 2"); a("s_and_b32 s32, s29, 3"); a("s_add_u32 s31, s31, s32  ; tblk")
    S_NB=30; S_TB=31
    a("v_lshrrev_b32 v2, 4, v1"); a("v_and_b32 v3, 15, v1"); a("v_lshrrev_b32 v3, 2, v3")
    a("v_lshrrev_b32 v4, 5, v1"); a("v_and_b32 v5, 31, v1")
    a(f"s_cmp_ge_u32 s{S_W}, 4")
    a(f"s_cbranch_scc1 {pre}_HELP")
    NT = 1 if P1 else 2
    NF = 3 if P1 else 4
    ACC=64
    def acc(tt,f): return ACC+16*(tt*NF+f)
    FR = ACC+16*NT*NF
    FSZ = 4*(NT+NF)
    def xf(b,tt): return FR+b*FSZ+4*tt
    def wf(b,f): return FR+b*FSZ+4*NT+4*f
    assert FR+2*FSZ<=256
    a(f"s_and_b32 s33, s{S_W}, 1"); a(f"s_lshr_b32 s34, s{S_W}, 1")
    S_TM=33; S_FA=34
    XA=8; WA=XA+4*NST
    NWA = 1 if P1 else 4
    assert WA+NWA*NST<=48
    a("v_lshrrev_b32 v6, 1, v5"); a("v_and_b32 v6, 7, v6"); a("v_xor_b32 v6, v6, v4"); a("v_lshlrev_b32 v6, 4, v6")
    a("v_lshlrev_b32 v7, 7, v5"); a("v_add_u32 v6, v6, v7")
    a(f"s_mul_i32 s35, s{S_TM}, {32*NT*128}")
    a("v_add_u32 v6, s35, v6")
    for st in range(NST):
        for s in range(4):
            a(f"v_xor_b32 v{XA+4*st+s}, {32*s}, v6")
            if st: a(f"v_add_u32 v{XA+4*st+s}, {st*STAGE}, v{XA+4*st+s}")
    a("v_lshlrev_b32 v6, 3, v4"); a("v_add_u32 v6, v6, v3"); a("v_lshlrev_b32 v6, 7, v6")
    a("v_and_b32 v7, 3, v1"); a("v_lshlrev_b32 v7, 3, v7"); a("v_add_u32 v6, v6, v7")
    a("v_lshrrev_b32 v7, 1, v3"); a("v_lshlrev_b32 v7, 6, v7")
    a("v_and_b32 v48, 1, v2")
    if P1:
        a(f"s_lshl_b32 s35, s{S_FA}, 6"); a("v_xor_b32 v7, s35, v7"); a("v_add_u32 v6, v6, v7")
        a("v_lshlrev_b32 v7, 5, v48"); a("v_add_u32 v6, v6, v7")
        a(f"v_add_u32 v6, {XB}, v6")
        for st in range(NST):
            a(f"v_add_u32 v{WA+st}, {st*STAGE}, v6")
    else:
        a("v_add_u32 v6, v6, v7")
        a("v_lshlrev_b32 v7, 5, v48"); a("v_add_u32 v6, v6, v7")
        a("v_lshlrev_b32 v7, 14, v48"); a("v_add_u32 v6, v6, v7")
        a(f"s_lshl_b32 s35, s{S_FA}, 13"); a(f"s_add_u32 s35, s35, {XB}"); a("v_add_u32 v6, s35, v6")
        for st in range(NST):
            for p in range(4):
                a(f"v_xor_b32 v{WA+4*st+p}, {((p&1)<<5)|((p>>1)<<6)}, v6")
                if st: a(f"v_add_u32 v{WA+4*st+p}, {st*STAGE}, v{WA+4*st+p}")
    for i in range(16*NT*NF): a(f"v_mov_b32 v{ACC+i}, 0")
    def reads(n):
        c=n//4; s=n%4; st=c%NST; b=n&1
        for tt in range(NT):
            a(f"ds_read_b128 {vr(xf(b,tt),4)}, v{XA+4*st+s} offset:{tt*32*128}")
        for f in range(NF):
            for u in range(2):
                if P1: a(f"ds_read_b64_tr_b16 {vr(wf(b,f)+2*u,2)}, v{WA+st} offset:{f*8192+(16*s+4*u)*128}")
                else:  a(f"ds_read_b64_tr_b16 {vr(wf(b,f)+2*u,2)}, v{WA+4*st+f} offset:{(16*s+4*u)*128}")
    NRD = NT+2*NF
    def mfmas(n):
        b=n&1
        for f in range(NF):
            for tt in range(NT):
                A_,B_ = (wf(b,f), xf(b,tt))
                if P1 and f==2: A_,B_ = B_,A_
                a(f"v_mfma_f32_32x32x16_bf16 {vr(acc(tt,f),16)}, {vr(A_,4)}, {vr(B_,4)}, {vr(acc(tt,f),16)}")
    a("s_barrier")
    reads(0)
    NK=32
    for n in range(NK):
        if n+1<NK:
            if (n+1)%4==0:
                a("s_waitcnt lgkmcnt(0)"); a("s_barrier"); reads(n+1)
            else:
                reads(n+1); a(f"s_waitcnt lgkmcnt({NRD})")
        else:
            a("s_waitcnt lgkmcnt(0)")
        mfmas(n)
    a("s_barrier")
    T0=8
    if P1:
        a(f"s_lshl_b32 s35, s{S_TM}, 7")
        a("v_lshlrev_b32 v6, 2, v5"); a("v_add_u32 v6, s35, v6")
        a(f"v_add_u32 v7, {STAT}, v6")
        a(f"ds_read_b32 v48, v7 offset:0"); a(f"ds_read_b32 v49, v7 offset:{TOK*4}")
        a(f"s_lshl_b32 s35, s{S_FA}, 7"); a(f"s_add_u32 s35, s35, {CS}")
        a("v_lshlrev_b32 v6, 4, v4"); a("v_add_u32 v6, s35, v6")
        for q in range(2):
            for j in range(4):
                a(f"ds_read_b128 {vr(T0+16*q+4*j,4)}, v6 offset:{q*256+j*32}")
        a("v_lshlrev_b32 v7, 2, v5"); a("v_add_u32 v7, s35, v7")
        a(f"ds_read_b32 v50, v7 offset:512")
        a(f"s_lshl_b32 s36, s{S_TM}, 7"); a(f"s_add_u32 s36, s36, {STAT}")
        a("v_lshlrev_b32 v7, 4, v4"); a("v_add_u32 v7, s36, v7")
        MV=FR; RV=FR+16
        assert RV+16<=256
        for j in range(4):
            a(f"ds_read_b128 {vr(MV+4*j,4)}, v7 offset:{j*32}")
            a(f"ds_read_b128 {vr(RV+4*j,4)}, v7 offset:{TOK*4+j*32}")
        a(f"s_lshl_b32 s37, s{S_TB}, 1"); a(f"s_add_u32 s37, s37, s{S_TM}       ; tb")
        a(f"s_lshl_b32 s38, s{S_NB}, 2"); a(f"s_lshl_b32 s39, s{S_FA}, 1"); a("s_add_u32 s38, s38, s39    ; headA")
        a("s_lshl_b32 s39, s38, 6"); a("s_add_u32 s39, s39, s37"); a("s_lshl_b32 s39, s39, 10")
        a("s_add_u32 s40, s39, 65536")
        a(f"s_add_u32 s41, s39, {2*MB}"); a(f"s_add_u32 s42, s40, {2*MB}")
        a("s_lshl_b32 s43, s38, 16"); a("s_lshl_b32 s44, s37, 10"); a("s_add_u32 s43, s43, s44"); a(f"s_add_u32 s43, s43, {4*MB}")
        a("s_add_u32 s44, s43, 512")
        a("v_lshlrev_b32 v51, 4, v1          ; lane*16")
        a("v_lshrrev_b32 v52, 4, v5"); a("v_lshlrev_b32 v52, 16, v52"); a("v_lshlrev_b32 v53, 8, v4"); a("v_add_u32 v52, v52, v53")
        a("v_and_b32 v53, 15, v5"); a("v_lshlrev_b32 v53, 4, v53"); a("v_add_u32 v52, v52, v53")
        a("s_waitcnt lgkmcnt(0)")
        a(f"v_mul_f32 v53, {f2u(0.25*LOG2E):#x}, v49      ; rstd*qscale")
        PK=40
        for q in range(2):
            rs = 53 if q==0 else 49
            A0=acc(0,q)
            for i in range(16):
                a(f"v_fma_f32 v{A0+i}, -v48, v{T0+16*q+i}, v{A0+i}")
            for i in range(16):
                a(f"v_mul_f32 v{A0+i}, v{rs}, v{A0+i}")
            pack8(a, PK, A0); pack8(a, PK+4, A0+8)
            a(f"buffer_store_dwordx4 {vr(PK,4)}, v51, {sr(SRD_O,4)}, s{39+2*q} offen")
            a(f"buffer_store_dwordx4 {vr(PK+4,4)}, v51, {sr(SRD_O,4)}, s{40+2*q} offen")
            PK=PK+0
            a("s_nop 1")
        A0=acc(0,2)
        for i in range(16):
            a(f"v_fma_f32 v{A0+i}, -v{MV+i}, v50, v{A0+i}")
        for i in range(16):
            a(f"v_mul_f32 v{A0+i}, v{RV+i}, v{A0+i}")
        pack8(a, T0, A0); pack8(a, T0+4, A0+8)
        a(f"buffer_store_dwordx4 {vr(T0,4)}, v52, {sr(SRD_O,4)}, s43 offen")
        a(f"buffer_store_dwordx4 {vr(T0+4,4)}, v52, {sr(SRD_O,4)}, s44 offen")
    else:
        a(f"s_lshl_b32 s35, s{S_TM}, 8"); a(f"s_add_u32 s35, s35, {STAT}")
        a("v_lshlrev_b32 v6, 2, v5"); a("v_add_u32 v6, s35, v6")
        for tt in range(2):
            a(f"ds_read_b32 v{48+tt}, v6 offset:{tt*128}"); a(f"ds_read_b32 v{50+tt}, v6 offset:{TOK*4+tt*128}")
        a(f"s_lshl_b32 s35, s{S_FA}, 9"); a(f"s_add_u32 s35, s35, {CS}")
        a("v_lshlrev_b32 v7, 4, v4"); a("v_add_u32 v7, s35, v7")
        CSR=FR
        a(f"s_lshl_b32 s37, s{S_TB}, 2"); a(f"s_lshl_b32 s38, s{S_TM}, 1"); a("s_add_u32 s37, s37, s38")
        a("s_mul_i32 s37, s37, 112")
        a(f"s_lshl_b32 s38, s{S_NB}, 3"); a(f"s_lshl_b32 s39, s{S_FA}, 2"); a("s_add_u32 s38, s38, s39"); a("s_add_u32 s37, s37, s38")
        a("s_lshl_b32 s37, s37, 10")
        a("v_lshlrev_b32 v54, 4, v1")
        for p in range(4):
            for j in range(4):
                a(f"ds_read_b128 {vr(T0+16*(p&1)+4*j,4)}, v7 offset:{p*128+j*32}")
            a("s_waitcnt lgkmcnt(0)")
            if p==0:
                for tt in range(2):
                    a(f"v_mul_f32 v{52+tt}, {f2u(-LOG2E):#x}, v{50+tt}")
            C0=T0+16*(p&1)
            for tt in range(2):
                A0=acc(tt,p)
                for i in range(16):
                    a(f"v_fma_f32 v{A0+i}, -v{48+tt}, v{C0+i}, v{A0+i}")
                for i in range(8):
                    a(f"v_mul_f32 v{A0+i}, v{52+tt}, v{A0+i}")
                for i in range(8):
                    a(f"v_exp_f32 v{A0+i}, v{A0+i}")
                for i in range(8):
                    a(f"v_mul_f32 v{A0+8+i}, v{50+tt}, v{A0+8+i}")
                for i in range(8):
                    a(f"v_add_f32 v{A0+i}, 1.0, v{A0+i}")
                for i in range(8):
                    a(f"v_rcp_f32 v{A0+i}, v{A0+i}")
                a("s_nop 0")
                for i in range(8):
                    a(f"v_mul_f32 v{A0+i}, v{A0+i}, v{A0+8+i}")
                PK=A0+8
                pack8(a, PK, A0)
                a(f"s_add_u32 s38, s37, {(tt*112+p)*1024}")
                a(f"buffer_store_dwordx4 {vr(PK,4)}, v54, {sr(SRD_O,4)}, s38 offen")
    a("s_waitcnt vmcnt(0)")
    a("s_endpgm")
    a.label(f"{pre}_HELP")
    a(f"s_sub_u32 s33, s{S_W}, 4      ; h")
    S_H=33
    a("v_lshrrev_b32 v6, 3, v1            ; lane>>3")
    a("v_and_b32 v7, 7, v1")
    for i in range(2):
        a(f"v_add_u32 v12, {4*i}, v2"); a("v_and_b32 v12, 7, v12"); a("v_xor_b32 v12, v12, v7"); a("v_lshlrev_b32 v12, 4, v12")
        a("v_lshlrev_b32 v13, 10, v6"); a(f"v_add_u32 v{8+i}, v12, v13")
    a(f"s_mov_b32 s35, {LDW}")
    a("v_mul_lo_u32 v13, v6, s35")
    a("v_and_b32 v12, 1, v2"); a("v_lshlrev_b32 v12, 2, v12")
    a("v_xor_b32 v12, v12, v7")
    a("v_lshlrev_b32 v14, 4, v12"); a("v_add_u32 v10, v13, v14")
    if not P1:
        a("v_xor_b32 v12, 2, v12"); a("v_lshlrev_b32 v14, 4, v12"); a("v_add_u32 v11, v13, v14")
    XROWS = TOK//4
    a(f"s_mul_i32 s36, s{S_TB}, {TOK*1024}"); a(f"s_mul_i32 s37, s{S_H}, {XROWS*1024}"); a("s_add_u32 s36, s36, s37")
    a(f"s_mul_i32 s37, s{S_H}, {16*LDW}")
    a(f"s_lshl_b32 s38, s{S_NB}, {7 if P1 else 8}"); a("s_add_u32 s37, s37, s38")
    a(f"s_mul_i32 s38, s{S_H}, {XROWS*128}")
    a(f"s_lshl_b32 s39, s{S_H}, 11"); a(f"s_add_u32 s39, s39, {XB}")
    def dma(c):
        st=c%NST
        for i in range(XI):
            a(f"s_add_u32 m0, s38, {st*STAGE+i*1024}")
            a(f"s_add_u32 s40, s36, {i*8192+c*128}")
            a(f"buffer_load_dwordx4 v{8+(i&1)}, {sr(SRD_A,4)}, s40 offen lds")
        for q in range(NSLAB):
            for i in range(2):
                a(f"s_add_u32 m0, s39, {st*STAGE+q*8192+i*1024}")
                if P1:
                    a(f"s_add_u32 s40, s37, {(c*64+8*i)*LDW+q*1024}")
                    a(f"buffer_load_dwordx4 v10, {sr(SRD_W,4)}, s40 offen lds")
                else:
                    a(f"s_add_u32 s40, s37, {(c*64+8*i)*LDW+(q&1)*128}")
                    a(f"buffer_load_dwordx4 v{10+(q>>1)}, {sr(SRD_W if q<2 else SRD_W2,4)}, s40 offen lds")
    for c in range(NST): dma(c)
    HX=16
    a("v_lshlrev_b32 v12, 4, v1"); a("v_add_u32 v12, s38, v12")
    for st in range(NST): a(f"v_add_u32 v{HX+st}, {st*STAGE}, v12")
    HW=20
    a("v_lshlrev_b32 v6, 3, v4"); a("v_add_u32 v6, v6, v3"); a("v_lshlrev_b32 v6, 7, v6")
    a("v_and_b32 v7, 3, v1"); a("v_lshlrev_b32 v7, 3, v7"); a("v_add_u32 v6, v6, v7")
    a("v_lshrrev_b32 v7, 1, v3"); a("v_lshlrev_b32 v7, 6, v7"); a("v_add_u32 v6, v6, v7")
    a("v_and_b32 v13, 1, v2")
    a("v_lshlrev_b32 v7, 5, v13"); a("v_add_u32 v6, v6, v7")
    if P1:
        a(f"s_and_b32 s41, s{S_H}, 1"); a("s_lshl_b32 s42, s41, 6"); a("v_xor_b32 v6, s42, v6")
        a(f"s_lshr_b32 s42, s{S_H}, 1"); a("s_lshl_b32 s42, s42, 13"); a(f"s_add_u32 s42, s42, {XB}")
        a("v_add_u32 v7, s42, v6"); a(f"v_add_u32 v13, {XB+2*8192}, v6")
        for st in range(NST):
            a(f"v_add_u32 v{HW+2*st}, {st*STAGE}, v7"); a(f"v_add_u32 v{HW+2*st+1}, {st*STAGE}, v13")
        a(f"s_lshl_b32 s43, s{S_H}, 7"); a(f"s_lshl_b32 s44, s41, 7"); a("s_add_u32 s44, s44, 512")
    else:
        a("v_lshlrev_b32 v7, 14, v13"); a("v_add_u32 v6, v6, v7")
        a(f"s_lshr_b32 s41, s{S_H}, 1"); a("s_lshl_b32 s41, s41, 13"); a(f"s_add_u32 s41, s41, {XB}"); a("v_add_u32 v6, s41, v6")
        a(f"s_and_b32 s42, s{S_H}, 1"); a("s_lshl_b32 s42, s42, 6"); a("v_xor_b32 v6, s42, v6")
        a("v_xor_b32 v7, 32, v6")
        for st in range(NST):
            a(f"v_add_u32 v{HW+2*st}, {st*STAGE}, v6"); a(f"v_add_u32 v{HW+2*st+1}, {st*STAGE}, v7")
        a(f"s_lshl_b32 s43, s{S_H}, 8"); a("s_add_u32 s44, s43, 128")
    SEL=32
    a("v_lshrrev_b32 v6, 3, v1"); a("v_and_b32 v6, 1, v6"); a("v_and_b32 v7, 1, v2"); a("v_xor_b32 v6, v6, v7")
    a("v_cmp_eq_u32 vcc, 0, v6"); a("v_mov_b32 v7, 0x3f803f80")
    for i in range(4): a(f"v_cndmask_b32 v{SEL+i}, 0, v7, vcc")
    CA=36
    for i in range(8): a(f"v_mov_b32 v{CA+i}, 0")
    SA=44
    for i in range(2*XI): a(f"v_mov_b32 v{SA+i}, 0")
    XD=64; WD=96; TMP=56
    for c in range(NCH):
        st=c%NST
        last = NST-1 if c==0 else min(NCH-1, c+NST-2)
        a(f"s_waitcnt vmcnt({(last-c)*NDMA})")
        a("s_barrier")
        if c>=1 and c+NST-1<NCH: dma(c+NST-1)
        for i in range(XI):
            a(f"ds_read_b128 {vr(XD+4*i,4)}, v{HX+st} offset:{i*1024}")
        for s in range(4):
            for k in range(2):
                for u in range(2):
                    a(f"ds_read_b64_tr_b16 {vr(WD+16*s*0+ (s*2+k)*4+2*u,2)}, v{HW+2*st+k} offset:{(16*s+4*u)*128}")
        a("s_waitcnt lgkmcnt(0)")
        for s in range(4):
            for k in range(2):
                a(f"v_mfma_f32_16x16x32_bf16 {vr(CA+4*k,4)}, {vr(SEL,4)}, {vr(WD+(s*2+k)*4,4)}, {vr(CA+4*k,4)}")
        for i in range(XI):
            for d in range(4):
                x=XD+4*i+d
                a(f"v_lshlrev_b32 v{TMP}, 16, v{x}"); a(f"v_and_b32 v{TMP+1}, 0xffff0000, v{x}")
                a(f"v_add_f32 v{SA+2*i}, v{SA+2*i}, v{TMP}"); a(f"v_fma_f32 v{SA+2*i+1}, v{TMP}, v{TMP}, v{SA+2*i+1}")
                a(f"v_add_f32 v{SA+2*i}, v{SA+2*i}, v{TMP+1}"); a(f"v_fma_f32 v{SA+2*i+1}, v{TMP+1}, v{TMP+1}, v{SA+2*i+1}")
    for i in range(2*XI):
        r=SA+i
        a(f"v_add_f32_dpp v{r}, v{r}, v{r} quad_perm:[1,0,3,2] row_mask:0xf bank_mask:0xf")
    for i in range(2*XI):
        r=SA+i
        a(f"v_add_f32_dpp v{r}, v{r}, v{r} quad_perm:[2,3,0,1] row_mask:0xf bank_mask:0xf")
    for i in range(2*XI):
        r=SA+i
        a(f"v_add_f32_dpp v{r}, v{r}, v{r} row_half_mirror row_mask:0xf bank_mask:0xf")
    a("v_lshrrev_b32 v6, 3, v1"); a("v_lshlrev_b32 v6, 2, v6")
    a(f"s_mul_i32 s41, s{S_H}, {XROWS*4}"); a(f"s_add_u32 s41, s41, {STAT}"); a("v_add_u32 v6, s41, v6")
    for i in range(XI):
        a(f"v_mul_f32 v{SA+2*i}, {f2u(1/512):#x}, v{SA+2*i}          ; mean")
        a(f"v_mul_f32 v{SA+2*i+1}, {f2u(1/512):#x}, v{SA+2*i+1}")
        a(f"v_fma_f32 v{SA+2*i+1}, -v{SA+2*i}, v{SA+2*i}, v{SA+2*i+1}")
        a(f"v_max_f32 v{SA+2*i+1}, 0, v{SA+2*i+1}")
        a(f"v_add_f32 v{SA+2*i+1}, {f2u(1e-5):#x}, v{SA+2*i+1}")
        a(f"v_rsq_f32 v{SA+2*i+1}, v{SA+2*i+1}")
        a(f"ds_write_b32 v6, v{SA+2*i} offset:{i*32}")
        a("s_nop 0")
        a(f"ds_write_b32 v6, v{SA+2*i+1} offset:{TOK*4+i*32}")
    a("v_lshlrev_b32 v6, 4, v4"); a("v_and_b32 v7, 15, v1"); a("v_add_u32 v6, v6, v7"); a("v_lshlrev_b32 v6, 2, v6")
    a(f"v_add_u32 v6, {CS}, v6")
    a("v_add_u32 v7, s43, v6"); a("v_add_u32 v6, s44, v6")
    a(f"ds_write_b32 v7, v{CA}"); a(f"ds_write_b32 v6, v{CA+4}")
    a("s_waitcnt lgkmcnt(0)")
    a("s_barrier")
    a.label(f"{pre}_END")
    a("s_endpgm")
    return (STAT+TOK*8+1024+255)//256*256

def res_gemm(a, mode, resspec, outspec):
    P3 = mode=='p3'
    KG = 32 if P3 else 112
    NCH = KG//8
    STAGE=32768; NST=4
    pre=a.pre
    if P3: prologue(a,256,[(SRD_A,('ws',WS_O),2*MB),(SRD_W,('wo',0),512*1024),(SRD_O,outspec,2*MB),(SRD_R,resspec,2*MB)])
    else:  prologue(a,256,[(SRD_A,('ws',WS_H),7*MB),(SRD_W,('wd',0),1792*1024),(SRD_O,outspec,2*MB),(SRD_R,resspec,2*MB)])
    a("s_and_b32 s28, s2, 7"); a("s_lshr_b32 s29, s2, 3")
    a("s_lshl_b32 s31, s28, 2"); a("s_and_b32 s32, s29, 3"); a("s_add_u32 s31, s31, s32"); a("s_lshr_b32 s30, s29, 2")
    S_NB=30; S_TB=31
    a("v_lshrrev_b32 v2, 4, v1"); a("v_and_b32 v3, 15, v1"); a("v_lshrrev_b32 v3, 2, v3")
    a("v_lshrrev_b32 v4, 5, v1"); a("v_and_b32 v5, 31, v1")
    a(f"s_cmp_ge_u32 s{S_W}, 4"); a(f"s_cbranch_scc1 {pre}_HELP")
    a(f"s_and_b32 s33, s{S_W}, 1"); a(f"s_lshr_b32 s34, s{S_W}, 1")
    S_TM=33; S_FN=34
    ACC=64; FR=96
    a(f"s_lshl_b32 s35, s{S_TB}, 6"); a(f"s_lshl_b32 s36, s{S_TM}, 5"); a("s_add_u32 s35, s35, s36"); a("s_lshl_b32 s35, s35, 10")
    a(f"s_lshl_b32 s36, s{S_NB}, 7"); a(f"s_lshl_b32 s37, s{S_FN}, 6"); a("s_add_u32 s36, s36, s37"); a("s_add_u32 s35, s35, s36")
    a("v_lshlrev_b32 v6, 10, v5"); a("v_lshlrev_b32 v7, 3, v4"); a("v_add_u32 v6, v6, v7")
    for j in range(4):
        a(f"buffer_load_dwordx2 {vr(48+2*j,2)}, v6, {sr(SRD_R,4)}, s35 offen offset:{16*j}")
    XA=8; WA=12
    a(f"s_lshl_b32 s36, s{S_TM}, 13"); a("v_lshlrev_b32 v7, 4, v1"); a("v_add_u32 v7, s36, v7")
    for st in range(NST): a(f"v_add_u32 v{XA+st}, {st*STAGE}, v7")
    a("v_lshlrev_b32 v7, 2, v4"); a("v_add_u32 v7, v7, v3"); a("v_lshlrev_b32 v7, 7, v7")
    a("v_and_b32 v16, 3, v1"); a("v_lshlrev_b32 v16, 3, v16"); a("v_add_u32 v7, v7, v16")
    a("v_lshrrev_b32 v16, 1, v3"); a("v_lshlrev_b32 v16, 6, v16"); a(f"s_lshl_b32 s36, s{S_FN}, 6"); a("v_xor_b32 v16, s36, v16"); a("v_add_u32 v7, v7, v16")
    a("v_and_b32 v16, 1, v2"); a("v_lshlrev_b32 v16, 5, v16"); a("v_add_u32 v7, v7, v16"); a("v_add_u32 v7, 16384, v7")
    for st in range(NST): a(f"v_add_u32 v{WA+st}, {st*STAGE}, v7")
    a("s_waitcnt vmcnt(0)")
    for j in range(4):
        for d in range(2):
            a(f"v_lshlrev_b32 v{ACC+4*j+2*d}, 16, v{48+2*j+d}"); a(f"v_and_b32 v{ACC+4*j+2*d+1}, 0xffff0000, v{48+2*j+d}")
    for i in range(16): a(f"v_mov_b32 v{ACC+16+i}, 0")
    def reads(n):
        c=n//8; s=n%8; st=c%NST; b=n%3
        a(f"ds_read_b128 {vr(FR+8*b,4)}, v{XA+st} offset:{s*1024}")
        for u in range(2):
            a(f"ds_read_b64_tr_b16 {vr(FR+8*b+4+2*u,2)}, v{WA+st} offset:{(16*s+8*u)*128}")
    def mf(n):
        b=n%3; A0=ACC+16*(n&1)
        a(f"v_mfma_f32_32x32x16_bf16 {vr(A0,16)}, {vr(FR+8*b+4,4)}, {vr(FR+8*b,4)}, {vr(A0,16)}")
    a("s_barrier")
    reads(0); reads(1)
    for n in range(KG):
        if n+2<KG:
            if (n+2)%8==0:
                a("s_waitcnt lgkmcnt(0)"); a("s_barrier"); reads(n+2)
                mf(n); continue
            elif (n+2)%8==1:
                reads(n+2); a("s_waitcnt lgkmcnt(6)")
            else:
                reads(n+2); a("s_waitcnt lgkmcnt(6)")
        elif n+1<KG: a("s_waitcnt lgkmcnt(3)")
        else: a("s_waitcnt lgkmcnt(0)")
        mf(n)
    for i in range(16): a(f"v_add_f32 v{ACC+i}, v{ACC+i}, v{ACC+16+i}")
    PK=48
    pack8(a,PK,ACC); pack8(a,PK+4,ACC+8)
    for g in range(2):
        a(f"v_permlane32_swap_b32 v{PK+4*g}, v{PK+4*g+2}"); a(f"v_permlane32_swap_b32 v{PK+4*g+1}, v{PK+4*g+3}")
    a("v_lshlrev_b32 v6, 10, v5"); a("v_lshlrev_b32 v7, 4, v4"); a("v_add_u32 v6, v6, v7")
    for g in range(2):
        a(f"buffer_store_dwordx4 {vr(PK+4*g,4)}, v6, {sr(SRD_O,4)}, s35 offen offset:{32*g}")
    a("s_waitcnt vmcnt(0)")
    a("s_endpgm")
    a.label(f"{pre}_HELP")
    a(f"s_sub_u32 s33, s{S_W}, 4")
    S_H=33
    a("v_lshlrev_b32 v8, 4, v1")
    a("v_lshrrev_b32 v6, 3, v1"); a("v_and_b32 v7, 7, v1"); a("v_lshlrev_b32 v6, 10, v6")
    a("v_and_b32 v12, 1, v2"); a("v_lshlrev_b32 v12, 2, v12"); a("v_xor_b32 v12, v12, v7"); a("v_lshlrev_b32 v12, 4, v12"); a("v_add_u32 v10, v6, v12")
    a(f"s_lshl_b32 s36, s{S_TB}, 1"); a(f"s_lshr_b32 s37, s{S_H}, 1"); a("s_add_u32 s36, s36, s37"); a(f"s_mul_i32 s36, s36, {KG*1024}")
    a(f"s_and_b32 s37, s{S_H}, 1"); a("s_lshl_b32 s37, s37, 12"); a("s_add_u32 s36, s36, s37")
    a(f"s_lshl_b32 s38, s{S_H}, 12")
    a(f"s_lshl_b32 s37, s{S_H}, 15"); a(f"s_lshl_b32 s39, s{S_NB}, 7"); a("s_add_u32 s37, s37, s39")
    a(f"s_lshl_b32 s39, s{S_H}, 12"); a("s_add_u32 s39, s39, 16384")
    def dma(c):
        st=c%NST
        for i in range(4):
            a(f"s_add_u32 m0, s38, {st*STAGE+i*1024}")
            a(f"s_add_u32 s40, s36, {c*8192+i*1024}")
            a(f"buffer_load_dwordx4 v8, {sr(SRD_A,4)}, s40 offen lds")
        for i in range(4):
            a(f"s_add_u32 m0, s39, {st*STAGE+i*1024}")
            a(f"s_add_u32 s40, s37, {(c*128+8*i)*1024}")
            a(f"buffer_load_dwordx4 v10, {sr(SRD_W,4)}, s40 offen lds")
    for c in range(min(NST,NCH)): dma(c)
    for c in range(NCH):
        last = min(NCH-1, NST-1) if c==0 else min(NCH-1, c+NST-2)
        a(f"s_waitcnt vmcnt({(last-c)*8})")
        a("s_barrier")
        if c>=1 and c+NST-1<NCH: dma(c+NST-1)
    a.label(f"{pre}_END")
    a("s_endpgm")
    return NST*STAGE

def attn(a):
    pre=a.pre
    prologue(a,256,[(SRD_A,('ws',WS_Q),6*MB),(SRD_O,('ws',WS_O),2*MB)])
    a("s_and_b32 s28, s2, 7"); a("s_lshr_b32 s29, s2, 3")
    a("s_lshl_b32 s30, s28, 2"); a("s_and_b32 s31, s29, 3"); a("s_add_u32 s30, s30, s31   ; head")
    a("s_lshr_b32 s31, s29, 2")
    a(f"s_lshl_b32 s32, s31, 3"); a(f"s_add_u32 s32, s32, s{S_W}")
    Q=8; K0=12; V0=20; P=36; S0=48; O=80; NM=96
    a("v_lshlrev_b32 v2, 4, v1      ; lane*16")
    a("s_lshl_b32 s33, s30, 16      ; head*65536")
    a("s_lshl_b32 s34, s32, 10"); a("s_add_u32 s34, s34, s33")
    a(f"buffer_load_dwordx4 {vr(Q,4)}, v2, {sr(SRD_A,4)}, s34 offen")
    a(f"s_lshl_b32 s35, s{S_W}, 10"); a("s_add_u32 s36, s33, s35")
    a(f"s_add_u32 s37, s36, {2*MB}"); a(f"s_add_u32 s38, s36, {4*MB}")
    for m in range(8):
        a(f"s_add_u32 m0, s35, {m*8192}"); a(f"s_add_u32 s40, s37, {m*8192}")
        a(f"buffer_load_dwordx4 v2, {sr(SRD_A,4)}, s40 offen lds")
        a(f"s_add_u32 m0, s35, {65536+m*8192}"); a(f"s_add_u32 s40, s38, {m*8192}")
        a(f"buffer_load_dwordx4 v2, {sr(SRD_A,4)}, s40 offen lds")
    a("v_lshrrev_b32 v4, 5, v1"); a("v_lshlrev_b32 v4, 8, v4"); a("v_and_b32 v5, 15, v1"); a("v_lshlrev_b32 v5, 4, v5")
    a("v_add_u32 v3, v4, v5"); a("v_add_u32 v3, 65536, v3")
    a("s_mov_b32 s44, 0x0000ffff"); a("s_mov_b32 s45, 0x0000ffff")
    for i in range(16): a(f"v_mov_b32 v{V0+i}, 0x3f803f80")
    for i in range(16): a(f"v_mov_b32 v{O+i}, 0")
    def S(t): return S0+16*(t&1)
    def Kf(t): return K0+4*(t&1)
    def Vf(t,g): return V0+8*(t&1)+4*g
    def rdK(t): a(f"ds_read_b128 {vr(Kf(t),4)}, v2 offset:{t*1024}")
    def rdV(t):
        a("s_mov_b64 exec, s[44:45]")
        for g in range(2): a(f"ds_read_b128 {vr(Vf(t,g),4)}, v3 offset:{t*1024+g*512}")
        a("s_mov_b64 exec, -1")
    def smf(t): a(f"v_mfma_f32_32x32x16_bf16 {vr(S(t),16)}, {vr(Kf(t),4)}, {vr(Q,4)}, 0")
    def pv(t,g): a(f"v_mfma_f32_32x32x16_bf16 {vr(O,16)}, {vr(Vf(t,g),4)}, {vr(P+4*g,4)}, {vr(O,16)}")
    a("s_waitcnt vmcnt(14)"); a("s_barrier")
    rdK(0); rdK(1); rdV(0)
    a("s_waitcnt lgkmcnt(0)")
    smf(0); smf(1)
    rdK(2)
    NT=64
    for t in range(NT):
        s=S(t)
        if t+3==8: a("s_waitcnt vmcnt(8)"); a("s_barrier")
        if t+3==32: a("s_waitcnt vmcnt(0)"); a("s_barrier")
        ex=lambda i: a(f"v_exp_f32 v{s+i}, v{s+i}")
        cv=lambda k: a(f"v_cvt_pk_bf16_f32 v{P+k}, v{s+2*k}, v{s+2*k+1}")
        for i in range(9): ex(i)
        for k in range(4): cv(k)
        ex(9); ex(10)
        a("s_waitcnt lgkmcnt(0)")
        pv(t,0)
        for i in range(11,16): ex(i)
        if t+1<NT: rdV(t+1)
        for k in range(4,8): cv(k)
        if t+2<NT: smf(t+2)
        else: a("s_nop 0")
        if t+3<NT: rdK(t+3)
        else: a("s_nop 0")
        pv(t,1)
    a("s_nop 15")
    a(f"v_cmp_le_f32 vcc, {f2u(2.0**-64):#x}, v{O+8}")
    a("s_mov_b64 s[46:47], vcc")
    a(f"v_cmp_ge_f32 vcc, {f2u(2.0**64):#x}, v{O+8}")
    a("s_and_b64 s[46:47], s[46:47], vcc")
    a(f"s_mov_b32 s48, {f2u(2.0**120):#x}")
    for i in range(8):
        a(f"v_cmp_gt_f32_e64 vcc, s48, |v{O+i}|")
        a("s_and_b64 s[46:47], s[46:47], vcc")
    a("s_cmp_eq_u64 s[46:47], -1")
    a(f"s_cbranch_scc1 {pre}_FIN")
    a(f"v_mov_b32 v{NM}, 0xff800000")
    a("v_mov_b32 v6, v2"); a("s_mov_b32 s49, 0")
    a.label(f"{pre}_MX")
    a(f"ds_read_b128 {vr(K0,4)}, v6"); a("s_waitcnt lgkmcnt(0)")
    a(f"v_mfma_f32_32x32x16_bf16 {vr(S0,16)}, {vr(K0,4)}, {vr(Q,4)}, 0")
    for i in range(0,16,2): a(f"v_max3_f32 v{NM}, v{S0+i}, v{S0+i+1}, v{NM}")
    a("v_add_u32 v6, 1024, v6"); a("s_add_u32 s49, s49, 1"); a("s_cmp_lt_u32 s49, 64"); a(f"s_cbranch_scc1 {pre}_MX")
    a(f"v_mov_b32 v{NM+1}, v{NM}")
    a(f"v_permlane32_swap_b32 v{NM}, v{NM+1}")
    a(f"v_max_f32 v{NM}, v{NM}, v{NM+1}")
    for i in range(16): a(f"v_sub_f32 v{S0+16+i}, 0, v{NM}")
    for i in range(16): a(f"v_mov_b32 v{O+i}, 0")
    a("v_mov_b32 v6, v2"); a("v_mov_b32 v7, v3"); a("s_mov_b32 s49, 0")
    a.label(f"{pre}_FB")
    a(f"ds_read_b128 {vr(K0,4)}, v6")
    a("s_mov_b64 exec, s[44:45]")
    for g in range(2): a(f"ds_read_b128 {vr(V0+4*g,4)}, v7 offset:{g*512}")
    a("s_mov_b64 exec, -1")
    a("s_waitcnt lgkmcnt(0)")
    a(f"v_mfma_f32_32x32x16_bf16 {vr(S0,16)}, {vr(K0,4)}, {vr(Q,4)}, {vr(S0+16,16)}")
    for i in range(16): a(f"v_exp_f32 v{S0+i}, v{S0+i}")
    for k in range(8): a(f"v_cvt_pk_bf16_f32 v{P+k}, v{S0+2*k}, v{S0+2*k+1}")
    for g in range(2): a(f"v_mfma_f32_32x32x16_bf16 {vr(O,16)}, {vr(V0+4*g,4)}, {vr(P+4*g,4)}, {vr(O,16)}")
    a("v_add_u32 v6, 1024, v6"); a("v_add_u32 v7, 1024, v7"); a("s_add_u32 s49, s49, 1"); a("s_cmp_lt_u32 s49, 64"); a(f"s_cbranch_scc1 {pre}_FB")
    a("s_nop 15")
    a.label(f"{pre}_FIN")
    a(f"v_rcp_f32 v6, v{O+8}")
    a("s_nop 0")
    for i in range(8): a(f"v_mul_f32 v{O+i}, v{O+i}, v6")
    pack8(a,P,O)
    a("s_lshl_b32 s34, s32, 5"); a("s_add_u32 s34, s34, s30"); a("s_lshl_b32 s34, s34, 10")
    a(f"buffer_store_dwordx4 {vr(P,4)}, v2, {sr(SRD_O,4)}, s34 offen")
    a("s_waitcnt vmcnt(0)")
    a.label(f"{pre}_END")
    a("s_endpgm")
    return 131072

def build(kernels, launches, hdr):
    out=[hdr]
    for (kn,grid,lds) in launches:
        out.append(f"; @launch kernel={kn} grid=({grid},1,1) block=(512,1,1) lds={lds}\n")
    out.append('.amdgcn_target "amdgcn-amd-amdhsa--gfx950"\n.text\n')
    for kn,(txt,vg) in kernels.items():
        out.append(f".globl {kn}\n.p2align 8\n.type {kn},@function\n{kn}:\n{txt}")
    out.append('.section .rodata,"a"\n')
    for kn,(txt,vg) in kernels.items():
        out.append(f""".p2align 6
.amdhsa_kernel {kn}
  .amdhsa_next_free_vgpr {vg}
  .amdhsa_next_free_sgpr 102
  .amdhsa_accum_offset {vg}
  .amdhsa_group_segment_fixed_size 0
  .amdhsa_kernarg_size 80
  .amdhsa_user_sgpr_count 2
  .amdhsa_user_sgpr_kernarg_segment_ptr 1
  .amdhsa_system_sgpr_workgroup_id_x 1
  .amdhsa_float_denorm_mode_32 3
.end_amdhsa_kernel
""")
    return ''.join(out)

def main():
    ref=open(f"cdna_kernels/{NAME}.s.ref").read()
    hdr=''.join(l+'\n' for l in ref.split('\n') if l.startswith(';') and '@launch' not in l and not l.startswith('; Override') and not l.startswith('; grid='))
    K={}; lds={}
    def mk(name, fn, *args):
        a=Asm(); a.pre=name.upper()
        lds[name]=fn(a,*args)
        K[name+"_kernel"]=(a.finalize(),256)
    mk('p1a', ln_gemm, 'p1', ('x',0)); mk('p1b', ln_gemm, 'p1', ('ws',WS_X2))
    mk('p2', attn)
    mk('p3a', res_gemm, 'p3', ('x',0), ('ws',WS_X1)); mk('p3b', res_gemm, 'p3', ('ws',WS_X2), ('ws',WS_X1))
    mk('p4', ln_gemm, 'p4', ('ws',WS_X1))
    mk('p5a', res_gemm, 'p5', ('ws',WS_X1), ('ws',WS_X2)); mk('p5b', res_gemm, 'p5', ('ws',WS_X1), ('out',0))
    G={'p4':224}
    order=['p1a','p2','p3a','p4','p5a','p1b','p2','p3b','p4','p5b']
    n=int(sys.argv[2]) if len(sys.argv)>2 else len(order)
    launches=[(k+"_kernel",G.get(k,256),lds[k]) for k in order[:n]]
    open(sys.argv[1] if len(sys.argv)>1 else f"cdna_kernels/{NAME}.s","w").write(build(K,launches,hdr))
main()
```
